```python
import torch

def _softmax(x, axis=-1):
    return torch.softmax(x, dim=axis)
def _gelu(x):
    return torch.nn.functional.gelu(x, approximate="tanh")
def _silu(x):
    return torch.nn.functional.silu(x)
def _sigmoid(x):
    return torch.sigmoid(x)
def _layernorm(x, axis=-1, eps=1e-5):
    m = x.mean(dim=axis, keepdim=True)
    v = x.var(dim=axis, keepdim=True, unbiased=False)
    return (x - m) / torch.sqrt(v + eps)
def _scatter_add(tgt, idx, src, axis=0):
    return tgt.clone().index_add_(axis, idx, src)
def _segment_sum(src, seg, n):
    out = torch.zeros((n,) + src.shape[1:], dtype=src.dtype)
    return out.index_add_(0, seg, src)
def _pad(x, pw):
    flat = tuple(v for pair in reversed(pw) for v in pair)
    return torch.nn.functional.pad(x, flat)

kernel_name = 'standalone__mha_softmax__near_ridge'

def setup_inputs():

    _w = (lambda a: (lambda t: t.to(torch.bfloat16) if t.is_floating_point() else t)(torch.as_tensor(a)))
    B, H, Sq, Sk, D = 8, 16, 384, 1024, 256
    return {
        "q": _w((lambda *s: torch.randn(*s, dtype=torch.bfloat16) * 0.8)(B, H, Sq, D)),
        "k": _w((lambda *s: torch.randn(*s, dtype=torch.bfloat16) * 0.8)(B, H, Sk, D)),
        "v": _w((lambda *s: torch.randn(*s, dtype=torch.bfloat16) * 0.05)(B, H, Sk, D)),
    }

def reference(q, k, v):
    scale = q.shape[-1] ** -0.5
    scores = torch.einsum("bhqd,bhkd->bhqk", q, k) * scale
    p = _softmax(scores, axis=-1)
    return torch.einsum("bhqk,bhkd->bhqd", p, v)
```

```python
import sys, struct, math

NAME = "standalone__mha_softmax__near_ridge"

S_BASE = [8, 56]
P_BASE = [104, 128]
FR_BASE = 152
NB = 8
QX_BASE = 184
KA = 216
VA = 224
DM = 232
NMC = 236
LS = 239
TSA = 242
TSB = 245
TMP = [248, 249, 250, 251, 252, 253]
T2 = [254, 255, 1, 5, 6, 7]
MREG = 2
SRD_Q, SRD_K, SRD_V, SRD_O = 8, 12, 16, 20
S_C, S_THR, S_IT, S_WOFF = 24, 25, 26, 27
S_K0, S_K1, S_V0, S_V1 = 28, 29, 30, 31
S_OUT = 32
S_T0, S_T1, S_T2 = 33, 34, 35

KSLOT = [0, 32768]
VSLOT = [0, 32768]
VBASE = 65536

C_SCALE = (256 ** -0.5) * math.log2(math.e)


def f32bits(x):
    return struct.unpack("<I", struct.pack("<f", x))[0]


def qfrag(qt, ks):
    idx = qt * 8 + ks
    if idx < 16:
        return f"a[{192 + idx * 4}:{192 + idx * 4 + 3}]"
    b = QX_BASE + (idx - 16) * 4
    return f"v[{b}:{b + 3}]"


def oacc(dt, qt):
    b = (dt * 3 + qt) * 4
    return f"a[{b}:{b + 3}]"


def vr(b, n=4):
    return f"v[{b}:{b + n - 1}]"


class G:
    def __init__(self):
        self.L = []
        self.lds_q = []

    def e(self, s):
        self.L.append("    " + s)

    def lab(self, s):
        self.L.append(s + ":")

    def lds(self, s, tag):
        self.e(s)
        self.lds_q.append(tag)

    def lds_wait(self, tag):
        idx = [i for i, t in enumerate(self.lds_q) if t == tag]
        if not idx:
            return
        last = idx[-1]
        n_after = len(self.lds_q) - 1 - last
        self.e(f"s_waitcnt lgkmcnt({min(n_after, 15)})")
        self.lds_q = self.lds_q[last + 1:]

    def lds_reset(self):
        self.lds_q = []


def b_half(p, half):
    ts = TSA if half == 0 else TSB
    pairs = [(kt, qt, rp) for kt in (2 * half, 2 * half + 1) for qt in range(3) for rp in range(2)]
    n = len(pairs)
    ops = []
    seen = set()

    def regs(k):
        return TMP[(k % 3) * 2], TMP[(k % 3) * 2 + 1]

    def s1(k):
        kt, qt, rp = pairs[k]
        s = S_BASE[p] + (kt * 3 + qt) * 4 + rp * 2
        a, b = regs(k)
        return [f"v_fma_f32 v{a}, v{s}, s{S_C}, v{NMC + qt}",
                f"v_fma_f32 v{b}, v{s + 1}, s{S_C}, v{NMC + qt}"]

    def s2(k):
        a, b = regs(k)
        return [f"v_exp_f32 v{a}, v{a}", f"v_exp_f32 v{b}, v{b}"]

    def s3(k):
        kt, qt, rp = pairs[k]
        a, b = regs(k)
        pr = P_BASE[p] + ((kt >> 1) * 3 + qt) * 4 + (kt & 1) * 2 + rp
        o = []
        if qt not in seen:
            seen.add(qt)
            o.append(f"v_add_f32 v{ts + qt}, v{a}, v{b}")
        else:
            o.append(f"v_add_f32 v{ts + qt}, v{ts + qt}, v{a}")
            o.append(f"v_add_f32 v{ts + qt}, v{ts + qt}, v{b}")
        o.append(f"v_cvt_pk_bf16_f32 v{pr}, v{a}, v{b}")
        return o

    for k in range(n + 2):
        if k < n:
            ops += s1(k)
        if 0 <= k - 1 < n:
            ops += s2(k - 1)
        if 0 <= k - 2 < n:
            ops += s3(k - 2)
    return ops


def check_ops():
    t = T2
    return [f"v_add_f32 v{t[0]}, v{TSA + 0}, v{TSB + 0}",
            f"v_add_f32 v{t[1]}, v{TSA + 1}, v{TSB + 1}",
            f"v_add_f32 v{t[2]}, v{TSA + 2}, v{TSB + 2}",
            f"v_max3_f32 v{t[3]}, v{t[0]}, v{t[1]}, v{t[2]}",
            f"v_cmp_nge_f32 vcc, s{S_THR}, v{t[3]}"]


def lsum_ops():
    t = T2
    return [f"v_add_f32 v{LS + q}, v{LS + q}, v{t[q]}" for q in range(3)]


def slow_path(g, p, rescale_o):
    t = T2
    al = [TMP[0], TMP[1], TMP[2]]
    for qt in range(3):
        s = [S_BASE[p] + (kt * 3 + qt) * 4 + r for kt in range(4) for r in range(4)]
        a, u = t[0], t[1]
        g.e(f"v_max3_f32 v{a}, v{s[0]}, v{s[1]}, v{s[2]}")
        for i in range(3, 15, 2):
            g.e(f"v_max3_f32 v{a}, v{a}, v{s[i]}, v{s[i + 1]}")
        g.e(f"v_max_f32 v{a}, v{a}, v{s[15]}")
        g.e(f"v_mov_b32 v{u}, v{a}")
        g.e("s_nop 1")
        g.e(f"v_permlane32_swap_b32 v{a}, v{u}")
        g.e(f"v_max_f32 v{a}, v{a}, v{u}")
        g.e(f"v_mov_b32 v{u}, v{a}")
        g.e("s_nop 1")
        g.e(f"v_permlane16_swap_b32 v{a}, v{u}")
        g.e(f"v_max_f32 v{a}, v{a}, v{u}")
        g.e(f"v_max_f32 v{a}, v{a}, v{MREG + qt}")
        g.e(f"v_sub_f32 v{u}, v{MREG + qt}, v{a}")
        g.e(f"v_mul_f32 v{u}, s{S_C}, v{u}")
        g.e(f"v_exp_f32 v{al[qt]}, v{u}")
        g.e(f"v_mov_b32 v{MREG + qt}, v{a}")
        g.e(f"v_mul_f32 v{NMC + qt}, -v{a}, s{S_C}")
        g.e(f"v_mul_f32 v{LS + qt}, v{LS + qt}, v{al[qt]}")
    if rescale_o:
        for dt in range(16):
            for qt in range(3):
                b = (dt * 3 + qt) * 4
                for r in range(4):
                    g.e(f"v_accvgpr_read_b32 v{t[r]}, a{b + r}")
                for r in range(4):
                    g.e(f"v_mul_f32 v{t[r]}, v{t[r]}, v{al[qt]}")
                for r in range(4):
                    g.e(f"v_accvgpr_write_b32 a{b + r}, v{t[r]}")
    for op in b_half(p, 0):
        g.e(op)
    for op in b_half(p, 1):
        g.e(op)
    for op in check_ops()[:3]:
        g.e(op)


def dma_ops(slot_base, s_g0, s_g1):
    ops = []
    for grp, sreg in ((0, s_g0), (1, s_g1)):
        ops.append(f"s_add_u32 m0, s{S_WOFF}, {slot_base + grp * 4096}")
        ops.append("NOP")
        for k in range(4):
            ops.append(f"buffer_load_dwordx4 v{DM + k}, s[SRD:SRD+3], s{sreg} offen offset:{k * 1024} lds")
    return ops


def interleave(g, mf, side, per=None):
    nm = sum(1 for m in mf if isinstance(m, str) and m.startswith("v_mfma"))
    ns = len(side)
    si = 0
    acc = 0.0
    rate = ns / max(nm, 1)
    for m in mf:
        if callable(m):
            m()
            continue
        g.e(m)
        if m.startswith("v_mfma"):
            acc += rate
            while acc >= 1.0 and si < ns:
                emit_side(g, side[si])
                si += 1
                acc -= 1.0
    while si < ns:
        emit_side(g, side[si])
        si += 1


def emit_side(g, op):
    if callable(op):
        op()
    elif op == "NOP":
        g.e("s_nop 0")
    else:
        g.e(op)


PD = 3


def iteration(g, p, tag, do_dk, do_dv, do_A, do_B2, do_B1):
    groups = []
    if do_A:
        for kt in range(4):
            for ks in range(8):
                groups.append(("K", kt, ks))
    for kg in range(2):
        for dt in range(16):
            groups.append(("V", kg, dt))
    nA = 32 if do_A else 0

    def issue_read(u):
        if u >= len(groups):
            return
        kind, a, b = groups[u]
        fb = FR_BASE + (u % NB) * 4
        if kind == "K":
            g.lds(f"ds_read_b128 {vr(fb)}, v{KA + b} offset:{KSLOT[1 - p] + a * 8192}", u)
        else:
            off = VSLOT[p] + a * 16384 + (b >> 3) * 256
            g.lds(f"ds_read_b64_tr_b16 {vr(fb, 2)}, v{VA + (b & 7)} offset:{off}", u)
            g.lds(f"ds_read_b64_tr_b16 {vr(fb + 2, 2)}, v{VA + (b & 7)} offset:{off + 8192}", u)

    def mfmas(u):
        kind, a, b = groups[u]
        fb = FR_BASE + (u % NB) * 4
        out = []
        for qt in range(3):
            if kind == "K":
                sreg = vr(S_BASE[1 - p] + (a * 3 + qt) * 4)
                c = "0" if b == 0 else sreg
                out.append(f"v_mfma_f32_16x16x32_bf16 {sreg}, {vr(fb)}, {qfrag(qt, b)}, {c}")
            else:
                pr = vr(P_BASE[p] + (a * 3 + qt) * 4)
                out.append(f"v_mfma_f32_16x16x32_bf16 {oacc(b, qt)}, {vr(fb)}, {pr}, {oacc(b, qt)}")
        return out

    def main(lo, hi):
        mf = []
        for u in range(lo, hi):
            mf.append(lambda u=u: issue_read(u + PD))
            mf.append(lambda u=u: g.lds_wait(u))
            mf += mfmas(u)
        return mf

    for u in range(PD):
        issue_read(u)

    side1 = []
    dma = []
    if do_dk:
        dma += [o.replace("s[SRD:SRD+3]", f"s[{SRD_K}:{SRD_K + 3}]") for o in dma_ops(KSLOT[p], S_K0, S_K1)]
    if do_dv:
        dma += [o.replace("s[SRD:SRD+3]", f"s[{SRD_V}:{SRD_V + 3}]") for o in dma_ops(VBASE + VSLOT[1 - p], S_V0, S_V1)]
    b2 = b_half(p, 1) if do_B2 else []
    bi = 0
    di = 0
    while bi < len(b2) or di < len(dma):
        if di < len(dma):
            side1.append(dma[di]); di += 1
            while di < len(dma) and (dma[di - 1].startswith("s_add_u32 m0") or dma[di - 1] == "NOP"):
                side1.append(dma[di]); di += 1
        for _ in range(4):
            if bi < len(b2):
                side1.append(b2[bi]); bi += 1
    adv = []
    if do_dk:
        adv += [f"s_add_u32 s{S_K0}, s{S_K0}, 32768", f"s_add_u32 s{S_K1}, s{S_K1}, 32768"]
    if do_dv:
        adv += [f"s_add_u32 s{S_V0}, s{S_V0}, 32768", f"s_add_u32 s{S_V1}, s{S_V1}, 32768"]
    side1 += adv
    if do_B2:
        side1 += check_ops()
        side1.append("s_nop 4")
        side1.append(f"s_cbranch_vccnz L_slow_{tag}")
        side1.append(lambda: g.lab(f"L_back_{tag}"))
        side1 += lsum_ops()
    side2 = b_half(1 - p, 0) if do_B1 else []

    if do_A:
        interleave(g, main(0, nA), side1)
    else:
        for op in side1:
            emit_side(g, op)
    interleave(g, main(nA, len(groups)), side2)


def gen():
    g = G()
    hdr = f"""; Flash-attention forward, gfx950.  q (8,16,384,256) k,v (8,16,1024,256) bf16 -> out (8,16,384,256) bf16
; @launch grid=(256,1,1) block=(256,1,1) lds=131072
.amdgcn_target "amdgcn-amd-amdhsa--gfx950"
.text
.globl {NAME}_kernel
.p2align 8
.type {NAME}_kernel,@function
{NAME}_kernel:"""
    g.L.append(hdr)
    e = g.e
    e("s_cmp_ge_u32 s2, 256")
    e("s_cbranch_scc1 L_end")
    e("s_load_dwordx4 s[36:39], s[0:1], 0")
    e("s_load_dwordx4 s[40:43], s[0:1], 16")
    e("v_lshrrev_b32 v1, 6, v0")
    e("s_nop 0")
    e("v_readfirstlane_b32 s44, v1")
    e("v_and_b32 v0, 63, v0")
    e("s_lshr_b32 s45, s2, 4")
    e("s_lshl_b32 s45, s45, 3")
    e("s_and_b32 s46, s2, 7")
    e("s_add_u32 s45, s45, s46")
    e("s_lshr_b32 s46, s2, 3")
    e("s_and_b32 s46, s46, 1")
    e("s_waitcnt lgkmcnt(0)")
    for srd, lo, size in ((SRD_Q, 36, 25165824), (SRD_K, 38, 67108864), (SRD_V, 40, 67108864), (SRD_O, 42, 25165824)):
        e(f"s_mov_b32 s{srd}, s{lo}")
        e(f"s_and_b32 s{srd + 1}, s{lo + 1}, 0xffff")
        e(f"s_mov_b32 s{srd + 2}, {size}")
        e(f"s_mov_b32 s{srd + 3}, 0x00020000")
    e(f"s_mov_b32 s{S_C}, 0x{f32bits(C_SCALE):08x}")
    e(f"s_mov_b32 s{S_THR}, 0x{f32bits(1024.0):08x}")
    e(f"s_lshl_b32 s{S_WOFF}, s44, 13")
    e("s_mul_i32 s47, s45, 384")
    e("s_mul_i32 s48, s46, 192")
    e("s_add_u32 s47, s47, s48")
    e("s_mul_i32 s48, s44, 48")
    e("s_add_u32 s47, s47, s48")
    e(f"s_lshl_b32 s{S_OUT}, s47, 9")
    e("s_lshl_b32 s49, s45, 19")
    e(f"s_add_u32 s{S_K0}, s49, s{S_WOFF}")
    e(f"s_add_u32 s{S_K1}, s{S_K0}, 4096")
    e(f"s_mov_b32 s{S_V0}, s{S_K0}")
    e(f"s_mov_b32 s{S_V1}, s{S_K1}")
    e("v_and_b32 v5, 15, v0")
    e("v_lshrrev_b32 v6, 4, v0")
    e("v_lshlrev_b32 v7, 9, v5")
    e("v_lshl_add_u32 v7, v6, 4, v7")
    for qt in range(3):
        e(f"s_add_u32 s{S_T0}, s{S_OUT}, {qt * 8192}")
        for ks in range(8):
            e(f"buffer_load_dwordx4 {qfrag(qt, ks)}, v7, s[{SRD_Q}:{SRD_Q + 3}], s{S_T0} offen offset:{ks * 64}")
    e("v_lshrrev_b32 v1, 5, v0")
    e(f"v_and_b32 v{T2[0]}, 31, v0")
    e(f"v_lshlrev_b32 v{T2[1]}, 1, v1")
    e("v_lshlrev_b32 v1, 9, v1")
    for k in range(4):
        e(f"v_add_u32 v{TMP[0]}, {4 * k}, v{T2[1]}")
        e(f"v_xor_b32 v{TMP[0]}, v{T2[0]}, v{TMP[0]}")
        e(f"v_lshl_add_u32 v{DM + k}, v{TMP[0]}, 4, v1")
    def dma(slot_base, srd, s0, s1):
        for grp, sreg in ((0, s0), (1, s1)):
            e(f"s_add_u32 m0, s{S_WOFF}, {slot_base + grp * 4096}")
            e("s_nop 0")
            for k in range(4):
                e(f"buffer_load_dwordx4 v{DM + k}, s[{srd}:{srd + 3}], s{sreg} offen offset:{k * 1024} lds")
    dma(KSLOT[0], SRD_K, S_K0, S_K1)
    e(f"s_add_u32 s{S_K0}, s{S_K0}, 32768")
    e(f"s_add_u32 s{S_K1}, s{S_K1}, 32768")
    dma(VBASE + VSLOT[0], SRD_V, S_V0, S_V1)
    e(f"s_add_u32 s{S_V0}, s{S_V0}, 32768")
    e(f"s_add_u32 s{S_V1}, s{S_V1}, 32768")
    dma(KSLOT[1], SRD_K, S_K0, S_K1)
    e(f"s_add_u32 s{S_K0}, s{S_K0}, 32768")
    e(f"s_add_u32 s{S_K1}, s{S_K1}, 32768")
    e(f"v_and_b32 v{T2[0]}, 7, v5")
    e(f"v_lshlrev_b32 v{T2[0]}, 1, v{T2[0]}")
    e(f"v_lshlrev_b32 v{T2[1]}, 9, v5")
    for ks in range(8):
        e(f"v_add_u32 v{TMP[0]}, {4 * ks}, v6")
        e(f"v_xor_b32 v{TMP[0]}, v{TMP[0]}, v{T2[0]}")
        e(f"v_lshl_add_u32 v{KA + ks}, v{TMP[0]}, 4, v{T2[1]}")
    e(f"v_lshrrev_b32 v{T2[0]}, 2, v5")
    e(f"v_lshl_add_u32 v{T2[0]}, v6, 2, v{T2[0]}")
    e(f"v_and_b32 v{T2[1]}, 7, v{T2[0]}")
    e(f"v_lshlrev_b32 v{T2[1]}, 1, v{T2[1]}")
    e(f"v_lshlrev_b32 v{T2[0]}, 9, v{T2[0]}")
    e(f"v_and_b32 v{TMP[1]}, 1, v5")
    e(f"v_lshl_add_u32 v{T2[0]}, v{TMP[1]}, 3, v{T2[0]}")
    e(f"v_add_u32 v{T2[0]}, {VBASE}, v{T2[0]}")
    e(f"v_bfe_u32 v{TMP[1]}, v5, 1, 1")
    for dt in range(8):
        e(f"v_add_u32 v{TMP[0]}, {2 * dt}, v{TMP[1]}")
        e(f"v_xor_b32 v{TMP[0]}, v{TMP[0]}, v{T2[1]}")
        e(f"v_lshl_add_u32 v{VA + dt}, v{TMP[0]}, 4, v{T2[0]}")
    for r in range(192):
        e(f"v_accvgpr_write_b32 a{r}, 0")
    for q in range(3):
        e(f"v_mov_b32 v{MREG + q}, 0xff800000")
        e(f"v_mov_b32 v{LS + q}, 0")
    e("s_waitcnt vmcnt(16)")
    e("s_barrier")
    g.lds_reset()
    groups = [(kt, ks) for kt in range(4) for ks in range(8)]
    def rd(u):
        if u < 32:
            kt, ks = groups[u]
            g.lds(f"ds_read_b128 {vr(FR_BASE + (u % NB) * 4)}, v{KA + ks} offset:{KSLOT[0] + kt * 8192}", u)
    for u in range(PD):
        rd(u)
    for u in range(32):
        rd(u + PD)
        g.lds_wait(u)
        kt, ks = groups[u]
        for qt in range(3):
            sreg = vr(S_BASE[0] + (kt * 3 + qt) * 4)
            c = "0" if ks == 0 else sreg
            e(f"v_mfma_f32_16x16x32_bf16 {sreg}, {vr(FR_BASE + (u % NB) * 4)}, {qfrag(qt, ks)}, {c}")
    e("s_nop 7")
    e("s_nop 1")
    slow_path(g, 0, rescale_o=False)
    e("s_waitcnt vmcnt(0)")
    e("s_barrier")
    e(f"s_mov_b32 s{S_IT}, 0")
    g.lab("L_loop")
    g.lds_reset()
    iteration(g, 0, "l0", True, True, True, True, True)
    e("s_waitcnt vmcnt(0)")
    e("s_barrier")
    g.lds_reset()
    iteration(g, 1, "l1", True, True, True, True, True)
    e("s_waitcnt vmcnt(0)")
    e("s_barrier")
    e(f"s_add_u32 s{S_IT}, s{S_IT}, 1")
    e(f"s_cmp_lt_u32 s{S_IT}, 7")
    e("s_cbranch_scc1 L_loop")
    g.lds_reset()
    iteration(g, 0, "t0", False, True, True, True, True)
    e("s_waitcnt vmcnt(0)")
    e("s_barrier")
    g.lds_reset()
    iteration(g, 1, "t1", False, False, False, True, False)
    e("s_nop 7")
    e("s_nop 1")
    t = T2
    rc = [TMP[0], TMP[1], TMP[2]]
    for qt in range(3):
        a, u = t[0], t[1]
        e(f"v_mov_b32 v{a}, v{LS + qt}")
        e(f"v_mov_b32 v{u}, v{LS + qt}")
        e("s_nop 1")
        e(f"v_permlane32_swap_b32 v{a}, v{u}")
        e(f"v_add_f32 v{a}, v{a}, v{u}")
        e(f"v_mov_b32 v{u}, v{a}")
        e("s_nop 1")
        e(f"v_permlane16_swap_b32 v{a}, v{u}")
        e(f"v_add_f32 v{a}, v{a}, v{u}")
        e(f"v_rcp_f32 v{rc[qt]}, v{a}")
    e("v_and_b32 v5, 15, v0")
    e("v_lshrrev_b32 v6, 4, v0")
    e("v_lshlrev_b32 v7, 9, v5")
    e("v_lshl_add_u32 v7, v6, 3, v7")
    stg = [S_BASE[0] + 4 * i for i in range(12)]
    si = 0
    for qt in range(3):
        e(f"s_add_u32 s{S_T0}, s{S_OUT}, {qt * 8192}")
        for dt in range(16):
            b = (dt * 3 + qt) * 4
            sb = stg[si % 12]; si += 1
            for r in range(4):
                e(f"v_accvgpr_read_b32 v{sb + r}, a{b + r}")
            for r in range(4):
                e(f"v_mul_f32 v{sb + r}, v{sb + r}, v{rc[qt]}")
            e(f"v_cvt_pk_bf16_f32 v{sb}, v{sb}, v{sb + 1}")
            e(f"v_cvt_pk_bf16_f32 v{sb + 1}, v{sb + 2}, v{sb + 3}")
            e(f"buffer_store_dwordx2 {vr(sb, 2)}, v7, s[{SRD_O}:{SRD_O + 3}], s{S_T0} offen offset:{dt * 32}")
    e("s_endpgm")
    for tag, p in (("l0", 0), ("l1", 1), ("t0", 0), ("t1", 1)):
        g.lab(f"L_slow_{tag}")
        slow_path(g, p, rescale_o=True)
        e(f"s_branch L_back_{tag}")
    g.lab("L_end")
    e("s_endpgm")
    g.L.append(f""".section .rodata,"a"
.p2align 6
.amdhsa_kernel {NAME}_kernel
  .amdhsa_next_free_vgpr 512
  .amdhsa_next_free_sgpr 64
  .amdhsa_accum_offset 256
  .amdhsa_group_segment_fixed_size 0
  .amdhsa_kernarg_size 48
  .amdhsa_user_sgpr_count 2
  .amdhsa_user_sgpr_kernarg_segment_ptr 1
  .amdhsa_system_sgpr_workgroup_id_x 1
.end_amdhsa_kernel""")
    return "\n".join(g.L) + "\n"


if __name__ == "__main__":
    out = sys.argv[1] if len(sys.argv) > 1 else f"cdna_kernels/{NAME}.s"
    open(out, "w").write(gen())
    print("wrote", out)
```

```python
import sys, struct, math

NAME = "standalone__mha_softmax__near_ridge"
import os
FLAGS = os.environ.get("GENFLAGS", "").split(",")

S_BASE = [8, 56]
P_BASE = [104, 128]
FR_BASE = 152
NB = 8
QX_BASE = 184
KA = 216
VA = 224
DM = 232
NMC = 236
LS = 239
TSA = 242
TSB = 245
TMP = [248, 249, 250, 251, 252, 253]
T2 = [254, 255, 1, 5, 6, 7]
MREG = 2
SRD_Q, SRD_K, SRD_V, SRD_O = 8, 12, 16, 20
S_C, S_THR, S_IT, S_WOFF = 24, 25, 26, 27
S_K0, S_K1, S_V0, S_V1 = 28, 29, 30, 31
S_OUT = 32
S_T0, S_T1, S_T2 = 33, 34, 35

KSLOT = [0, 32768]
VSLOT = [0, 32768]
VBASE = 65536

C_SCALE = (256 ** -0.5) * math.log2(math.e)


def f32bits(x):
    return struct.unpack("<I", struct.pack("<f", x))[0]


def qfrag(qt, ks):
    idx = qt * 8 + ks
    if idx < 16:
        return f"a[{192 + idx * 4}:{192 + idx * 4 + 3}]"
    b = QX_BASE + (idx - 16) * 4
    return f"v[{b}:{b + 3}]"


def oacc(dt, qt):
    b = (dt * 3 + qt) * 4
    return f"a[{b}:{b + 3}]"


def vr(b, n=4):
    return f"v[{b}:{b + n - 1}]"


STAMP = False


class G:
    def stamp(self):
        if not STAMP:
            return
        self.e("s_memtime s[50:51]")
        self.e("s_waitcnt lgkmcnt(0)")
        self.e("v_mbcnt_lo_u32_b32 v6, -1, 0")
        self.e("v_mbcnt_hi_u32_b32 v6, -1, v6")
        self.e("v_mov_b32 v7, s50")
        self.e("v_cmp_eq_u32 vcc, s52, v6")
        self.e("s_nop 1")
        self.e("v_cndmask_b32 v0, v0, v7, vcc")
        self.e("s_add_u32 s52, s52, 1")
        self.lds_q = []

    def __init__(self):
        self.L = []
        self.lds_q = []

    def e(self, s):
        self.L.append("    " + s)

    def lab(self, s):
        self.L.append(s + ":")

    def lds(self, s, tag):
        self.e(s)
        self.lds_q.append(tag)

    def lds_wait(self, tag):
        idx = [i for i, t in enumerate(self.lds_q) if t == tag]
        if not idx:
            return
        last = idx[-1]
        n_after = len(self.lds_q) - 1 - last
        self.e(f"s_waitcnt lgkmcnt({min(n_after, 15)})")
        self.lds_q = self.lds_q[last + 1:]

    def lds_reset(self):
        self.lds_q = []


def b_half(p, half):
    ts = TSA if half == 0 else TSB
    pairs = [(kt, qt, rp) for kt in (2 * half, 2 * half + 1) for qt in range(3) for rp in range(2)]
    n = len(pairs)
    ops = []
    seen = set()

    def regs(k):
        return TMP[(k % 3) * 2], TMP[(k % 3) * 2 + 1]

    def s1(k):
        kt, qt, rp = pairs[k]
        s = S_BASE[p] + (kt * 3 + qt) * 4 + rp * 2
        a, b = regs(k)
        return [f"v_fma_f32 v{a}, v{s}, s{S_C}, v{NMC + qt}",
                f"v_fma_f32 v{b}, v{s + 1}, s{S_C}, v{NMC + qt}"]

    def s2(k):
        a, b = regs(k)
        if "noexp" in FLAGS:
            return [f"v_mov_b32 v{a}, v{a}", f"v_mov_b32 v{b}, v{b}"]
        return [f"v_exp_f32 v{a}, v{a}", f"v_exp_f32 v{b}, v{b}"]

    def s3(k):
        kt, qt, rp = pairs[k]
        a, b = regs(k)
        pr = P_BASE[p] + ((kt >> 1) * 3 + qt) * 4 + (kt & 1) * 2 + rp
        o = []
        if qt not in seen:
            seen.add(qt)
            o.append(f"v_add_f32 v{ts + qt}, v{a}, v{b}")
        else:
            o.append(f"v_add_f32 v{ts + qt}, v{ts + qt}, v{a}")
            o.append(f"v_add_f32 v{ts + qt}, v{ts + qt}, v{b}")
        o.append(f"v_cvt_pk_bf16_f32 v{pr}, v{a}, v{b}")
        return o

    for k in range(n + 2):
        if k < n:
            ops += s1(k)
        if 0 <= k - 1 < n:
            ops += s2(k - 1)
        if 0 <= k - 2 < n:
            ops += s3(k - 2)
    return ops


def check_ops():
    t = T2
    return [f"v_add_f32 v{t[0]}, v{TSA + 0}, v{TSB + 0}",
            f"v_add_f32 v{t[1]}, v{TSA + 1}, v{TSB + 1}",
            f"v_add_f32 v{t[2]}, v{TSA + 2}, v{TSB + 2}",
            f"v_max3_f32 v{t[3]}, v{t[0]}, v{t[1]}, v{t[2]}",
            f"v_cmp_nge_f32 vcc, s{S_THR}, v{t[3]}"]


def lsum_ops():
    t = T2
    return [f"v_add_f32 v{LS + q}, v{LS + q}, v{t[q]}" for q in range(3)]


def slow_path(g, p, rescale_o):
    t = T2
    al = [TMP[0], TMP[1], TMP[2]]
    for qt in range(3):
        s = [S_BASE[p] + (kt * 3 + qt) * 4 + r for kt in range(4) for r in range(4)]
        a, u = t[0], t[1]
        g.e(f"v_max3_f32 v{a}, v{s[0]}, v{s[1]}, v{s[2]}")
        for i in range(3, 15, 2):
            g.e(f"v_max3_f32 v{a}, v{a}, v{s[i]}, v{s[i + 1]}")
        g.e(f"v_max_f32 v{a}, v{a}, v{s[15]}")
        g.e(f"v_mov_b32 v{u}, v{a}")
        g.e("s_nop 1")
        g.e(f"v_permlane32_swap_b32 v{a}, v{u}")
        g.e(f"v_max_f32 v{a}, v{a}, v{u}")
        g.e(f"v_mov_b32 v{u}, v{a}")
        g.e("s_nop 1")
        g.e(f"v_permlane16_swap_b32 v{a}, v{u}")
        g.e(f"v_max_f32 v{a}, v{a}, v{u}")
        g.e(f"v_max_f32 v{a}, v{a}, v{MREG + qt}")
        g.e(f"v_sub_f32 v{u}, v{MREG + qt}, v{a}")
        g.e(f"v_mul_f32 v{u}, s{S_C}, v{u}")
        g.e(f"v_exp_f32 v{al[qt]}, v{u}")
        g.e(f"v_mov_b32 v{MREG + qt}, v{a}")
        g.e(f"v_mul_f32 v{NMC + qt}, -v{a}, s{S_C}")
        g.e(f"v_mul_f32 v{LS + qt}, v{LS + qt}, v{al[qt]}")
    if rescale_o:
        for dt in range(16):
            for qt in range(3):
                b = (dt * 3 + qt) * 4
                for r in range(4):
                    g.e(f"v_accvgpr_read_b32 v{t[r]}, a{b + r}")
                for r in range(4):
                    g.e(f"v_mul_f32 v{t[r]}, v{t[r]}, v{al[qt]}")
                for r in range(4):
                    g.e(f"v_accvgpr_write_b32 a{b + r}, v{t[r]}")
    for op in b_half(p, 0):
        g.e(op)
    for op in b_half(p, 1):
        g.e(op)
    for op in check_ops()[:3]:
        g.e(op)


def dma_ops(slot_base, s_g0, s_g1):
    ops = []
    for grp, sreg in ((0, s_g0), (1, s_g1)):
        ops.append(f"s_add_u32 m0, s{S_WOFF}, {slot_base + grp * 4096}")
        ops.append("NOP")
        for k in range(4):
            ops.append(f"buffer_load_dwordx4 v{DM + k}, s[SRD:SRD+3], s{sreg} offen offset:{k * 1024} lds")
    return ops


def interleave(g, mf, side, per=None):
    nm = sum(1 for m in mf if isinstance(m, str) and m.startswith("v_mfma"))
    ns = len(side)
    si = 0
    acc = 0.0
    rate = ns / max(nm, 1)
    for m in mf:
        if callable(m):
            m()
            continue
        g.e(m)
        if m.startswith("v_mfma"):
            acc += rate
            while acc >= 1.0 and si < ns:
                emit_side(g, side[si])
                si += 1
                acc -= 1.0
    while si < ns:
        emit_side(g, side[si])
        si += 1


def emit_side(g, op):
    if callable(op):
        op()
    elif op == "NOP":
        g.e("s_nop 0")
    else:
        g.e(op)


PD = 4


def iteration(g, p, tag, do_dk, do_dv, do_A, do_B2, do_B1):
    groups = []
    if do_A:
        for kt in range(4):
            for ks in range(8):
                groups.append(("K", kt, ks))
    for kg in range(2):
        for dt in range(16):
            groups.append(("V", kg, dt))
    nA = 32 if do_A else 0

    def issue_read(u):
        if u >= len(groups):
            return
        kind, a, b = groups[u]
        fb = FR_BASE + (u % NB) * 4
        if kind == "K":
            g.lds(f"ds_read_b128 {vr(fb)}, v{KA + b} offset:{KSLOT[1 - p] + a * 8192}", u)
        else:
            off = VSLOT[p] + a * 16384 + (b >> 3) * 256
            g.lds(f"ds_read_b64_tr_b16 {vr(fb, 2)}, v{VA + (b & 7)} offset:{off}", u)
            g.lds(f"ds_read_b64_tr_b16 {vr(fb + 2, 2)}, v{VA + (b & 7)} offset:{off + 8192}", u)

    def mfmas(u):
        kind, a, b = groups[u]
        fb = FR_BASE + (u % NB) * 4
        out = []
        for qt in range(3):
            if kind == "K":
                sreg = vr(S_BASE[1 - p] + (a * 3 + qt) * 4)
                c = "0" if b == 0 else sreg
                out.append(f"v_mfma_f32_16x16x32_bf16 {sreg}, {vr(fb)}, {qfrag(qt, b)}, {c}")
            else:
                pr = vr(P_BASE[p] + (a * 3 + qt) * 4)
                out.append(f"v_mfma_f32_16x16x32_bf16 {oacc(b, qt)}, {vr(fb)}, {pr}, {oacc(b, qt)}")
        return out

    def main(lo, hi):
        mf = []
        for u in range(lo, hi):
            mf.append(lambda u=u: issue_read(u + PD))
            if (u - lo) % 2 == 0:
                mf.append(lambda u=u: g.lds_wait(min(u + 1, hi - 1)))
            mf += mfmas(u)
        return mf

    for u in range(PD):
        issue_read(u)

    side1 = []
    dma = []
    if do_dk:
        dma += [o.replace("s[SRD:SRD+3]", f"s[{SRD_K}:{SRD_K + 3}]") for o in dma_ops(KSLOT[p], S_K0, S_K1)]
    if do_dv:
        dma += [o.replace("s[SRD:SRD+3]", f"s[{SRD_V}:{SRD_V + 3}]") for o in dma_ops(VBASE + VSLOT[1 - p], S_V0, S_V1)]
    if "nodma" in FLAGS:
        dma = []
    b2 = b_half(p, 1) if do_B2 else []
    if "novalu" in FLAGS:
        b2 = []
    bi = 0
    di = 0
    while bi < len(b2) or di < len(dma):
        if di < len(dma):
            side1.append(dma[di]); di += 1
            while di < len(dma) and (dma[di - 1].startswith("s_add_u32 m0") or dma[di - 1] == "NOP"):
                side1.append(dma[di]); di += 1
        for _ in range(4):
            if bi < len(b2):
                side1.append(b2[bi]); bi += 1
    adv = []
    if do_dk:
        adv += [f"s_add_u32 s{S_K0}, s{S_K0}, 32768", f"s_add_u32 s{S_K1}, s{S_K1}, 32768"]
    if do_dv:
        adv += [f"s_add_u32 s{S_V0}, s{S_V0}, 32768", f"s_add_u32 s{S_V1}, s{S_V1}, 32768"]
    side1 += adv
    if do_B2:
        side1 += check_ops()
        def br():
            g.e("s_nop 4")
            g.e(f"s_cbranch_vccnz L_slow_{tag}")
            g.lab(f"L_back_{tag}")
        side1.append(br)
        side1 += lsum_ops()
    side2 = b_half(1 - p, 0) if do_B1 else []
    if "novalu" in FLAGS:
        side2 = []

    if do_A:
        interleave(g, main(0, nA), side1)
    else:
        for op in side1:
            emit_side(g, op)
    g.stamp()
    interleave(g, main(nA, len(groups)), side2)
    g.stamp()


def gen():
    g = G()
    hdr = f"""; Flash-attention forward, gfx950.  q (8,16,384,256) k,v (8,16,1024,256) bf16 -> out (8,16,384,256) bf16
; @launch grid=(256,1,1) block=(256,1,1) lds=131072
.amdgcn_target "amdgcn-amd-amdhsa--gfx950"
.text
.globl {NAME}_kernel
.p2align 8
.type {NAME}_kernel,@function
{NAME}_kernel:"""
    g.L.append(hdr)
    e = g.e

    def bar():
        e("s_barrier")
        g.stamp()
    e("s_cmp_ge_u32 s2, 256")
    e("s_cbranch_scc1 L_end")
    e("s_load_dwordx4 s[36:39], s[0:1], 0")
    e("s_load_dwordx4 s[40:43], s[0:1], 16")
    if STAMP:
        e("s_load_dwordx2 s[54:55], s[0:1], 40")
        e("s_mov_b32 s52, 0")
        e("s_memtime s[62:63]")
        e("s_memrealtime s[64:65]")
    e("v_lshrrev_b32 v1, 6, v0")
    e("s_nop 0")
    e("v_readfirstlane_b32 s44, v1")
    e("v_and_b32 v0, 63, v0")
    e("s_lshr_b32 s45, s2, 4")
    e("s_lshl_b32 s45, s45, 3")
    e("s_and_b32 s46, s2, 7")
    e("s_add_u32 s45, s45, s46")
    e("s_lshr_b32 s46, s2, 3")
    e("s_and_b32 s46, s46, 1")
    e("s_waitcnt lgkmcnt(0)")
    for srd, lo, size in ((SRD_Q, 36, 25165824), (SRD_K, 38, 67108864), (SRD_V, 40, 67108864), (SRD_O, 42, 25165824)):
        e(f"s_mov_b32 s{srd}, s{lo}")
        e(f"s_and_b32 s{srd + 1}, s{lo + 1}, 0xffff")
        e(f"s_mov_b32 s{srd + 2}, {size}")
        e(f"s_mov_b32 s{srd + 3}, 0x00020000")
    e(f"s_mov_b32 s{S_C}, 0x{f32bits(C_SCALE):08x}")
    e(f"s_mov_b32 s{S_THR}, 0x{f32bits(1024.0):08x}")
    e(f"s_lshl_b32 s{S_WOFF}, s44, 13")
    e("s_mul_i32 s47, s45, 384")
    e("s_mul_i32 s48, s46, 192")
    e("s_add_u32 s47, s47, s48")
    e("s_mul_i32 s48, s44, 48")
    e("s_add_u32 s47, s47, s48")
    e(f"s_lshl_b32 s{S_OUT}, s47, 9")
    e("s_lshl_b32 s49, s45, 19")
    e(f"s_add_u32 s{S_K0}, s49, s{S_WOFF}")
    e(f"s_add_u32 s{S_K1}, s{S_K0}, 4096")
    e(f"s_mov_b32 s{S_V0}, s{S_K0}")
    e(f"s_mov_b32 s{S_V1}, s{S_K1}")
    e("v_and_b32 v5, 15, v0")
    e("v_lshrrev_b32 v6, 4, v0")
    e("v_lshlrev_b32 v7, 9, v5")
    e("v_lshl_add_u32 v7, v6, 4, v7")
    e("v_lshrrev_b32 v1, 5, v0")
    e(f"v_and_b32 v{T2[0]}, 31, v0")
    e(f"v_lshlrev_b32 v{T2[1]}, 1, v1")
    e("v_lshlrev_b32 v1, 9, v1")
    for k in range(4):
        e(f"v_add_u32 v{TMP[0]}, {4 * k}, v{T2[1]}")
        e(f"v_xor_b32 v{TMP[0]}, v{T2[0]}, v{TMP[0]}")
        e(f"v_lshl_add_u32 v{DM + k}, v{TMP[0]}, 4, v1")
    def dma(slot_base, srd, s0, s1):
        for grp, sreg in ((0, s0), (1, s1)):
            e(f"s_add_u32 m0, s{S_WOFF}, {slot_base + grp * 4096}")
            e("s_nop 0")
            for k in range(4):
                e(f"buffer_load_dwordx4 v{DM + k}, s[{srd}:{srd + 3}], s{sreg} offen offset:{k * 1024} lds")
    dma(KSLOT[0], SRD_K, S_K0, S_K1)
    e(f"s_add_u32 s{S_K0}, s{S_K0}, 32768")
    e(f"s_add_u32 s{S_K1}, s{S_K1}, 32768")
    for qt in range(3):
        e(f"s_add_u32 s{S_T0}, s{S_OUT}, {qt * 8192}")
        for ks in range(8):
            e(f"buffer_load_dwordx4 {qfrag(qt, ks)}, v7, s[{SRD_Q}:{SRD_Q + 3}], s{S_T0} offen offset:{ks * 64}")
    dma(VBASE + VSLOT[0], SRD_V, S_V0, S_V1)
    e(f"s_add_u32 s{S_V0}, s{S_V0}, 32768")
    e(f"s_add_u32 s{S_V1}, s{S_V1}, 32768")
    dma(KSLOT[1], SRD_K, S_K0, S_K1)
    e(f"s_add_u32 s{S_K0}, s{S_K0}, 32768")
    e(f"s_add_u32 s{S_K1}, s{S_K1}, 32768")
    e(f"v_and_b32 v{T2[0]}, 7, v5")
    e(f"v_lshlrev_b32 v{T2[0]}, 1, v{T2[0]}")
    e(f"v_lshlrev_b32 v{T2[1]}, 9, v5")
    for ks in range(8):
        e(f"v_add_u32 v{TMP[0]}, {4 * ks}, v6")
        e(f"v_xor_b32 v{TMP[0]}, v{TMP[0]}, v{T2[0]}")
        e(f"v_lshl_add_u32 v{KA + ks}, v{TMP[0]}, 4, v{T2[1]}")
    e(f"v_lshrrev_b32 v{T2[0]}, 2, v5")
    e(f"v_lshl_add_u32 v{T2[0]}, v6, 2, v{T2[0]}")
    e(f"v_and_b32 v{T2[1]}, 7, v{T2[0]}")
    e(f"v_lshlrev_b32 v{T2[1]}, 1, v{T2[1]}")
    e(f"v_lshlrev_b32 v{T2[0]}, 9, v{T2[0]}")
    e(f"v_and_b32 v{TMP[1]}, 1, v5")
    e(f"v_lshl_add_u32 v{T2[0]}, v{TMP[1]}, 3, v{T2[0]}")
    e(f"v_add_u32 v{T2[0]}, {VBASE}, v{T2[0]}")
    e(f"v_bfe_u32 v{TMP[1]}, v5, 1, 1")
    for dt in range(8):
        e(f"v_add_u32 v{TMP[0]}, {2 * dt}, v{TMP[1]}")
        e(f"v_xor_b32 v{TMP[0]}, v{TMP[0]}, v{T2[1]}")
        e(f"v_lshl_add_u32 v{VA + dt}, v{TMP[0]}, 4, v{T2[0]}")
    for r in range(192):
        e(f"v_accvgpr_write_b32 a{r}, 0")
    for q in range(3):
        e(f"v_mov_b32 v{MREG + q}, 0xff800000")
        e(f"v_mov_b32 v{LS + q}, 0")
    e("s_waitcnt vmcnt(16)")
    bar()
    g.lds_reset()
    groups = [(kt, ks) for kt in range(4) for ks in range(8)]
    def rd(u):
        if u < 32:
            kt, ks = groups[u]
            g.lds(f"ds_read_b128 {vr(FR_BASE + (u % NB) * 4)}, v{KA + ks} offset:{KSLOT[0] + kt * 8192}", u)
    for u in range(PD):
        rd(u)
    for u in range(32):
        rd(u + PD)
        g.lds_wait(u)
        kt, ks = groups[u]
        for qt in range(3):
            sreg = vr(S_BASE[0] + (kt * 3 + qt) * 4)
            c = "0" if ks == 0 else sreg
            e(f"v_mfma_f32_16x16x32_bf16 {sreg}, {vr(FR_BASE + (u % NB) * 4)}, {qfrag(qt, ks)}, {c}")
    e("s_nop 7")
    e("s_nop 1")
    slow_path(g, 0, rescale_o=False)
    e("s_waitcnt vmcnt(0)")
    bar()
    e(f"s_mov_b32 s{S_IT}, 0")
    g.lab("L_loop")
    g.lds_reset()
    iteration(g, 0, "l0", True, True, True, True, True)
    e("s_waitcnt vmcnt(0)")
    bar()
    g.lds_reset()
    iteration(g, 1, "l1", True, True, True, True, True)
    e("s_waitcnt vmcnt(0)")
    bar()
    e(f"s_add_u32 s{S_IT}, s{S_IT}, 1")
    e(f"s_cmp_lt_u32 s{S_IT}, 7")
    e("s_cbranch_scc1 L_loop")
    g.lds_reset()
    iteration(g, 0, "t0", False, True, True, True, True)
    e("s_waitcnt vmcnt(0)")
    bar()
    g.lds_reset()
    iteration(g, 1, "t1", False, False, False, True, False)
    e("s_nop 7")
    e("s_nop 1")
    t = T2
    rc = [TMP[0], TMP[1], TMP[2]]
    for qt in range(3):
        a, u = t[0], t[1]
        e(f"v_mov_b32 v{a}, v{LS + qt}")
        e(f"v_mov_b32 v{u}, v{LS + qt}")
        e("s_nop 1")
        e(f"v_permlane32_swap_b32 v{a}, v{u}")
        e(f"v_add_f32 v{a}, v{a}, v{u}")
        e(f"v_mov_b32 v{u}, v{a}")
        e("s_nop 1")
        e(f"v_permlane16_swap_b32 v{a}, v{u}")
        e(f"v_add_f32 v{a}, v{a}, v{u}")
        e(f"v_rcp_f32 v{rc[qt]}, v{a}")
    if STAMP:
        g.stamp()
        e("v_mov_b32 v9, v0")
        e("v_mbcnt_lo_u32_b32 v0, -1, 0")
        e("v_mbcnt_hi_u32_b32 v0, -1, v0")
        e("s_mov_b32 s56, s54")
        e("s_and_b32 s57, s55, 0xffff")
        e("s_mov_b32 s58, 0x100000")
        e("s_mov_b32 s59, 0x00020000")
        e("s_lshl_b32 s53, s2, 10")
        e(f"s_lshr_b32 s60, s{S_WOFF}, 5")
        e("s_add_u32 s53, s53, s60")
        e("v_lshlrev_b32 v8, 2, v0")
        e("buffer_store_dword v9, v8, s[56:59], s53 offen")
    e("v_and_b32 v5, 15, v0")
    e("v_lshrrev_b32 v6, 4, v0")
    e("v_lshlrev_b32 v7, 9, v5")
    e("v_and_b32 v1, 1, v6")
    e("v_lshl_add_u32 v7, v1, 5, v7")
    e("v_lshrrev_b32 v1, 1, v6")
    e("v_lshl_add_u32 v7, v1, 4, v7")
    stg = [S_BASE[0] + 8 * i for i in range(12)]
    si = 0
    for qt in range(3):
        e(f"s_add_u32 s{S_T0}, s{S_OUT}, {qt * 8192}")
        for dt in range(0, 16, 2):
            sb = stg[si % 12]; si += 1
            for h in range(2):
                b = ((dt + h) * 3 + qt) * 4
                for r in range(4):
                    e(f"v_accvgpr_read_b32 v{sb + 4 * h + r}, a{b + r}")
            for r in range(8):
                e(f"v_mul_f32 v{sb + r}, v{sb + r}, v{rc[qt]}")
            e(f"v_cvt_pk_bf16_f32 v{sb}, v{sb}, v{sb + 1}")
            e(f"v_cvt_pk_bf16_f32 v{sb + 1}, v{sb + 2}, v{sb + 3}")
            e(f"v_cvt_pk_bf16_f32 v{sb + 2}, v{sb + 4}, v{sb + 5}")
            e(f"v_cvt_pk_bf16_f32 v{sb + 3}, v{sb + 6}, v{sb + 7}")
            e("s_nop 1")
            e(f"v_permlane16_swap_b32 v{sb}, v{sb + 2}")
            e(f"v_permlane16_swap_b32 v{sb + 1}, v{sb + 3}")
            e(f"buffer_store_dwordx4 {vr(sb, 4)}, v7, s[{SRD_O}:{SRD_O + 3}], s{S_T0} offen offset:{dt * 32}")
    if STAMP:
        e("s_waitcnt vmcnt(0)")
        e("s_memtime s[50:51]")
        e("s_memrealtime s[66:67]")
        e("s_waitcnt lgkmcnt(0)")
        e("s_sub_u32 s50, s50, s62")
        e("s_sub_u32 s66, s66, s64")
        e("v_mov_b32 v10, s50")
        e("v_mov_b32 v11, s66")
        e("s_lshl_b32 s53, s2, 5")
        e(f"s_lshr_b32 s60, s{S_WOFF}, 10")
        e("s_add_u32 s53, s53, s60")
        e("s_add_u32 s53, s53, 0x80000")
        e("v_mov_b32 v8, 0")
        e("buffer_store_dwordx2 v[10:11], v8, s[56:59], s53 offen")
    e("s_endpgm")
    for tag, p in (("l0", 0), ("l1", 1), ("t0", 0), ("t1", 1)):
        g.lab(f"L_slow_{tag}")
        slow_path(g, p, rescale_o=True)
        e(f"s_branch L_back_{tag}")
    g.lab("L_end")
    e("s_endpgm")
    g.L.append(f""".section .rodata,"a"
.p2align 6
.amdhsa_kernel {NAME}_kernel
  .amdhsa_next_free_vgpr 512
  .amdhsa_next_free_sgpr 72
  .amdhsa_accum_offset 256
  .amdhsa_group_segment_fixed_size 0
  .amdhsa_kernarg_size 48
  .amdhsa_user_sgpr_count 2
  .amdhsa_user_sgpr_kernarg_segment_ptr 1
  .amdhsa_system_sgpr_workgroup_id_x 1
.end_amdhsa_kernel""")
    return "\n".join(g.L) + "\n"


if __name__ == "__main__":
    if "--stamp" in sys.argv:
        STAMP = True
        sys.argv.remove("--stamp")
    out = sys.argv[1] if len(sys.argv) > 1 else f"cdna_kernels/{NAME}.s"
    open(out, "w").write(gen())
    print("wrote", out)
```
